```python
import torch

def _softmax(x, axis=-1):
    return torch.softmax(x, dim=axis)
def _gelu(x):
    return torch.nn.functional.gelu(x, approximate="tanh")
def _silu(x):
    return torch.nn.functional.silu(x)
def _sigmoid(x):
    return torch.sigmoid(x)
def _layernorm(x, axis=-1, eps=1e-5):
    m = x.mean(dim=axis, keepdim=True)
    v = x.var(dim=axis, keepdim=True, unbiased=False)
    return (x - m) / torch.sqrt(v + eps)
def _scatter_add(tgt, idx, src, axis=0):
    return tgt.clone().index_add_(axis, idx, src)
def _segment_sum(src, seg, n):
    out = torch.zeros((n,) + src.shape[1:], dtype=src.dtype)
    return out.index_add_(0, seg, src)
def _pad(x, pw):
    flat = tuple(v for pair in reversed(pw) for v in pair)
    return torch.nn.functional.pad(x, flat)

kernel_name = 'standalone__mha_block_cached__near_ridge'

def setup_inputs():

    _w = (lambda a: (lambda t: t.to(torch.bfloat16) if t.is_floating_point() else t)(torch.as_tensor(a)))
    B, Sq, D = 32, 144, 512
    H, Sk, Dh = 32, 512, 128
    return {
        "x": _w((lambda *s: torch.randn(*s, dtype=torch.bfloat16) * 0.8)(B, Sq, D)),
        "k_cache": _w((lambda *s: torch.randn(*s, dtype=torch.bfloat16) * 0.8)(B, H, Sk, Dh)),
        "v_cache": _w((lambda *s: torch.randn(*s, dtype=torch.bfloat16) * 0.05)(B, H, Sk, Dh)),
        "wq": _w((lambda *s: torch.randn(*s, dtype=torch.bfloat16) * 0.8)(D, H * Dh) * (D ** -0.5)),
        "wo": _w((lambda *s: torch.randn(*s, dtype=torch.bfloat16) * 0.05)(H * Dh, D) * ((H * Dh) ** -0.5)),
    }

def reference(x, k_cache, v_cache, wq, wo):
    B, Sq, D = x.shape
    H, Dh = 32, 128
    q = (lambda x, *d: x.permute(*d))((x @ wq).reshape(B, Sq, H, Dh), 0, 2, 1, 3)
    scores = torch.einsum("bhqd,bhkd->bhqk", q, k_cache) * (Dh ** -0.5)
    p = _softmax(scores, axis=-1)
    o = torch.einsum("bhqk,bhkd->bhqd", p, v_cache)
    return (lambda x, *d: x.permute(*d))(o, 0, 2, 1, 3).reshape(B, Sq, H * Dh) @ wo
```

```python
import sys
L = []
def e(s): L.append("    " + s)
def lab(s): L.append(s + ":")
def nop(n): e(f"s_nop {n}")

B, SQ, D, H, SK, DH = 32, 144, 512, 32, 512, 128
SLOT = 16384
SCALE_LOG2E = 1.4426950408889634 / (128 ** 0.5)
import struct
def f2u(f): return struct.unpack("<I", struct.pack("<f", f))[0]

VQ = 0
VO = 48
VS = 144
VP = 192
VF = 216
VM = 232
VL = 235
VA = 238
VT = 241
VRA = 245
VRT = 246
VRW = 247
VXO = 248
VOO = 249
def vq(qt,u): return VQ + (qt*4+u)*4
def vo(dt,qt): return VO + (dt*3+qt)*4
def vs(kt,qt): return VS + (kt*3+qt)*4
def vx(buf,qt,ks): return VS + (buf*6+qt*2+ks)*4
def vp(ks,qt): return VP + (ks*3+qt)*4
def vf(i): return VF + (i%4)*4
def r4(b): return f"v[{b}:{b+3}]"
def r2(b): return f"v[{b}:{b+1}]"

def srd(dst, ptr, nbytes):
    e(f"s_mov_b32 s{dst}, s{ptr}")
    e(f"s_and_b32 s{dst+1}, s{ptr+1}, 0xffff")
    e(f"s_mov_b32 s{dst+2}, {nbytes}")
    e(f"s_mov_b32 s{dst+3}, 0x00020000")

def k1():
    lab("mha_attn_kernel")
    e("s_cmp_ge_u32 s2, 1024")
    e("s_cbranch_scc1 K1_END")
    e("s_load_dwordx8 s[8:15], s[0:1], 0")
    e("s_load_dwordx2 s[16:17], s[0:1], 56")
    e("s_lshr_b32 s4, s2, 5")
    e("s_and_b32 s5, s2, 31")
    e("v_lshrrev_b32 v1, 6, v0")
    nop(0)
    e("v_readfirstlane_b32 s6, v1")
    e("v_and_b32 v0, 63, v0")
    e("s_waitcnt lgkmcnt(0)")
    srd(20, 8, B*SQ*D*2)
    srd(24, 10, B*H*SK*DH*2)
    srd(28, 12, B*H*SK*DH*2)
    srd(32, 14, D*H*DH*2)
    srd(36, 16, B*SQ*H*DH*2)
    e("s_cmp_eq_u32 s6, 3")
    e("s_cbranch_scc1 K1_LOADER")
    e("v_and_b32 v1, 15, v0")
    e("v_lshrrev_b32 v2, 4, v0")
    e("v_xor_b32 v3, v1, v2")
    e("v_lshlrev_b32 v3, 4, v3")
    e(f"v_lshl_add_u32 v{VRA}, v1, 8, v3")
    e("v_lshrrev_b32 v3, 2, v1")
    e("v_and_b32 v4, 3, v1")
    e("v_lshl_add_u32 v5, v2, 2, v3")
    e("v_and_b32 v6, 7, v5")
    e("v_lshlrev_b32 v6, 1, v6")
    e("v_lshrrev_b32 v7, 1, v4")
    e("v_xor_b32 v6, v6, v7")
    e("v_lshlrev_b32 v6, 4, v6")
    e("v_and_b32 v7, 1, v4")
    e("v_lshl_add_u32 v6, v7, 3, v6")
    e(f"v_lshl_add_u32 v{VRT}, v5, 8, v6")
    e("v_lshl_add_u32 v5, v2, 3, v3")
    e("v_lshlrev_b32 v6, 2, v3")
    e("v_xor_b32 v6, v6, v4")
    e("v_lshlrev_b32 v6, 4, v6")
    e(f"v_lshl_add_u32 v{VRW}, v5, 8, v6")
    e("s_mul_i32 s7, s4, 144")
    e("s_mul_i32 s18, s6, 48")
    e("s_add_u32 s7, s7, s18")
    e("v_add_u32 v3, s7, v1")
    e("v_lshlrev_b32 v3, 10, v3")
    e(f"v_lshl_add_u32 v{VXO}, v2, 4, v3")
    e("v_add_u32 v3, s7, v1")
    e("v_lshlrev_b32 v3, 13, v3")
    e("s_lshl_b32 s18, s5, 8")
    e("v_add_u32 v3, s18, v3")
    e(f"v_lshl_add_u32 v{VOO}, v2, 3, v3")
    e("s_movk_i32 s40, 0x4000")
    e("s_movk_i32 s41, 0x0")
    e("s_mov_b32 s42, 0x8000")
    for i in range(96): e(f"v_mov_b32 v{VO+i}, 0")
    def xload(buf, step):
        for qt in range(3):
            for ks in range(2):
                so = ["s41","s40","s42"][qt]
                e(f"buffer_load_dwordx4 {r4(vx(buf,qt,ks))}, v{VXO}, s[20:23], {so} offen offset:{step*128+ks*64}")
    xload(0, 0)
    for s in range(8):
        buf = s & 1
        e("s_barrier")
        if s < 7: xload(buf ^ 1, s + 1)
        base = (s % 4) * SLOT
        fi = 0
        seq = [(ks, t) for ks in range(2) for t in range(8)]
        def wread(idx):
            ks, t = seq[idx]
            u = t >> 1
            off = base + ks*32*256
            e(f"v_xor_b32 v{VT}, {u*64}, v{VRW}")
            e(f"ds_read_b64_tr_b16 {r2(vf(idx))}, v{VT} offset:{off + (t&1)*8}")
            e(f"ds_read_b64_tr_b16 {r2(vf(idx)+2)}, v{VT} offset:{off + (t&1)*8 + 4*256}")
        wread(0); wread(1)
        e(f"s_waitcnt vmcnt({6 if s<7 else 0})")
        for idx in range(16):
            ks, t = seq[idx]
            if idx + 2 < 16: wread(idx + 2)
            e(f"s_waitcnt lgkmcnt({min(4, 2*(15-idx))})")
            for qt in range(3):
                e(f"v_mfma_f32_16x16x32_bf16 {r4(vo(t,qt))}, {r4(vf(idx))}, {r4(vx(buf,qt,ks))}, {r4(vo(t,qt))}")
    nop(7); nop(1)
    for qt in range(3):
        for u in range(4):
            a = vo(2*u,qt); b_ = vo(2*u+1,qt); q = vq(qt,u)
            e(f"v_cvt_pk_bf16_f32 v{q}, v{a}, v{a+1}")
            e(f"v_cvt_pk_bf16_f32 v{q+1}, v{a+2}, v{a+3}")
            e(f"v_cvt_pk_bf16_f32 v{q+2}, v{b_}, v{b_+1}")
            e(f"v_cvt_pk_bf16_f32 v{q+3}, v{b_+2}, v{b_+3}")
    for i in range(96): e(f"v_mov_b32 v{VO+i}, 0")
    for qt in range(3):
        e(f"v_mov_b32 v{VM+qt}, 0xff800000")
        e(f"v_mov_b32 v{VL+qt}, 0")
    e(f"s_mov_b32 s43, {f2u(SCALE_LOG2E)}")
    e("s_mov_b32 s44, 4")
    lab("K1_LOOP")
    for half in range(2):
        kb = (2*half) * SLOT; vb = (2*half+1) * SLOT
        e("s_barrier")
        for kt in range(4):
            for qt in range(3):
                for i in range(4): e(f"v_mov_b32 v{vs(kt,qt)+i}, 0")
        seq = [(kt,u) for kt in range(4) for u in range(4)]
        def kread(idx):
            kt,u = seq[idx]
            e(f"v_xor_b32 v{VT}, {u*64}, v{VRA}")
            e(f"ds_read_b128 {r4(vf(idx))}, v{VT} offset:{kb + kt*4096}")
        kread(0); kread(1)
        for idx in range(16):
            kt,u = seq[idx]
            if idx+2 < 16: kread(idx+2)
            e(f"s_waitcnt lgkmcnt({min(2,15-idx)})")
            for qt in range(3):
                e(f"v_mfma_f32_16x16x32_bf16 {r4(vs(kt,qt))}, {r4(vf(idx))}, {r4(vq(qt,u))}, {r4(vs(kt,qt))}")
        nop(7); nop(1)
        for qt in range(3):
            t0, t1 = VT, VT+1
            e(f"v_max3_f32 v{t0}, v{vs(0,qt)}, v{vs(0,qt)+1}, v{vs(0,qt)+2}")
            e(f"v_max_f32 v{t0}, v{t0}, v{vs(0,qt)+3}")
            for kt in range(1,4):
                e(f"v_max3_f32 v{t0}, v{t0}, v{vs(kt,qt)}, v{vs(kt,qt)+1}")
                e(f"v_max3_f32 v{t0}, v{t0}, v{vs(kt,qt)+2}, v{vs(kt,qt)+3}")
            e(f"v_mov_b32 v{t1}, v{t0}")
            nop(1)
            e(f"v_permlane32_swap_b32 v{t0}, v{t1}")
            e(f"v_max_f32 v{t0}, v{t0}, v{t1}")
            e(f"v_mov_b32 v{t1}, v{t0}")
            nop(1)
            e(f"v_permlane16_swap_b32 v{t0}, v{t1}")
            e(f"v_max3_f32 v{t0}, v{t0}, v{t1}, v{VM+qt}")
            e(f"v_sub_f32 v{t1}, v{VM+qt}, v{t0}")
            e(f"v_mul_f32 v{t1}, s43, v{t1}")
            e(f"v_exp_f32 v{VA+qt}, v{t1}")
            e(f"v_mov_b32 v{VM+qt}, v{t0}")
            e(f"v_mul_f32 v{t0}, s43, v{t0}")
            e(f"v_mul_f32 v{VL+qt}, v{VL+qt}, v{VA+qt}")
            for kt in range(4):
                for i in range(4):
                    r = vs(kt,qt)+i
                    e(f"v_fma_f32 v{r}, v{r}, s43, -v{t0}")
                    e(f"v_exp_f32 v{r}, v{r}")
            nop(0)
            for kt in range(4):
                for i in range(4):
                    e(f"v_add_f32 v{VL+qt}, v{VL+qt}, v{vs(kt,qt)+i}")
            for ks in range(2):
                p = vp(ks,qt); a = vs(2*ks,qt); b_ = vs(2*ks+1,qt)
                e(f"v_cvt_pk_bf16_f32 v{p}, v{a}, v{a+1}")
                e(f"v_cvt_pk_bf16_f32 v{p+1}, v{a+2}, v{a+3}")
                e(f"v_cvt_pk_bf16_f32 v{p+2}, v{b_}, v{b_+1}")
                e(f"v_cvt_pk_bf16_f32 v{p+3}, v{b_+2}, v{b_+3}")
            for dt in range(8):
                for i in range(4):
                    e(f"v_mul_f32 v{vo(dt,qt)+i}, v{vo(dt,qt)+i}, v{VA+qt}")
        e("s_barrier")
        seq = [(ks,t) for ks in range(2) for t in range(8)]
        def vread(idx):
            ks,t = seq[idx]
            off = vb + ks*32*256
            e(f"v_xor_b32 v{VT}, {t*32}, v{VRT}")
            e(f"ds_read_b64_tr_b16 {r2(vf(idx))}, v{VT} offset:{off}")
            e(f"ds_read_b64_tr_b16 {r2(vf(idx)+2)}, v{VT} offset:{off+16*256}")
        vread(0); vread(1)
        for idx in range(16):
            ks,t = seq[idx]
            if idx+2 < 16: vread(idx+2)
            e(f"s_waitcnt lgkmcnt({min(4,2*(15-idx))})")
            for qt in range(3):
                e(f"v_mfma_f32_16x16x32_bf16 {r4(vo(t,qt))}, {r4(vf(idx))}, {r4(vp(ks,qt))}, {r4(vo(t,qt))}")
    e("s_sub_u32 s44, s44, 1")
    e("s_cmp_lg_u32 s44, 0")
    e("s_cbranch_scc1 K1_LOOP")
    nop(7); nop(1)
    for qt in range(3):
        t0,t1 = VT,VT+1
        e(f"v_mov_b32 v{t0}, v{VL+qt}")
        e(f"v_mov_b32 v{t1}, v{VL+qt}")
        nop(1)
        e(f"v_permlane32_swap_b32 v{t0}, v{t1}")
        e(f"v_add_f32 v{t0}, v{t0}, v{t1}")
        e(f"v_mov_b32 v{t1}, v{t0}")
        nop(1)
        e(f"v_permlane16_swap_b32 v{t0}, v{t1}")
        e(f"v_add_f32 v{t0}, v{t0}, v{t1}")
        e(f"v_rcp_f32 v{t0}, v{t0}")
        nop(0)
        for dt in range(8):
            o = vo(dt,qt)
            for i in range(4): e(f"v_mul_f32 v{o+i}, v{o+i}, v{t0}")
            e(f"v_cvt_pk_bf16_f32 v{o}, v{o}, v{o+1}")
            e(f"v_cvt_pk_bf16_f32 v{o+1}, v{o+2}, v{o+3}")
            so = ["s41","s45","s46"][qt]
            if dt == 0 and qt == 0:
                e("s_mov_b32 s45, 0x20000"); e("s_mov_b32 s46, 0x40000")
            e(f"buffer_store_dwordx2 {r2(o)}, v{VOO}, s[36:39], {so} offen offset:{dt*32}")
    e("s_endpgm")
    lab("K1_LOADER")
    e("v_and_b32 v1, 15, v0")
    e("v_lshrrev_b32 v2, 4, v0")
    e("v_lshlrev_b32 v3, 2, v2")
    e("v_xor_b32 v3, v3, v1")
    e("v_lshlrev_b32 v3, 4, v3")
    e("v_lshl_add_u32 v3, v2, 13, v3")
    e("s_lshl_b32 s18, s5, 8")
    e("v_add_u32 v10, s18, v3")
    for j in range(4):
        e(f"v_add_u32 v3, {4*j}, v2")
        e("v_xor_b32 v3, v3, v1")
        e("v_lshlrev_b32 v3, 4, v3")
        e(f"v_lshl_add_u32 v{11+j}, v2, 8, v3")
    for j in range(2):
        e(f"v_add_u32 v3, {4*j}, v2")
        e("v_lshlrev_b32 v3, 1, v3")
        e("v_xor_b32 v3, v3, v1")
        e("v_lshlrev_b32 v3, 4, v3")
        e(f"v_lshl_add_u32 v{15+j}, v2, 8, v3")
    e("s_lshl_b32 s47, s2, 17")
    def issue(step):
        slot = (step % 4) * SLOT
        for i in range(16):
            e(f"s_mov_b32 m0, {slot + i*1024}")
            if step < 8:
                e(f"s_mov_b32 s48, {step*64*8192 + i*4*8192}")
                e(f"buffer_load_dwordx4 v10, s[32:35], s48 offen lds")
            else:
                j = (step-8) >> 1
                e(f"s_add_u32 s48, s47, {j*16384 + i*1024}")
                if (step & 1) == 0:
                    e(f"buffer_load_dwordx4 v{11+(i&3)}, s[24:27], s48 offen lds")
                else:
                    e(f"buffer_load_dwordx4 v{15+(i&1)}, s[28:31], s48 offen lds")
    issue(0); issue(1); issue(2)
    for s in range(24):
        n = min(23 - s, 2) * 16
        e(f"s_waitcnt vmcnt({n})")
        e("s_barrier")
        if s + 3 < 24: issue(s + 3)
    lab("K1_END")
    e("s_endpgm")

def k2():
    lab("mha_oproj_kernel")
    e("s_cmp_ge_u32 s2, 256")
    e("s_cbranch_scc1 K2_END")
    e("s_load_dwordx4 s[8:11], s[0:1], 32")
    e("s_load_dwordx2 s[16:17], s[0:1], 56")
    e("s_lshr_b32 s4, s2, 3")
    e("s_and_b32 s5, s2, 7")
    e("v_lshrrev_b32 v1, 6, v0"); nop(0)
    e("v_readfirstlane_b32 s6, v1")
    e("v_and_b32 v0, 63, v0")
    e("s_waitcnt lgkmcnt(0)")
    srd(20, 16, B*SQ*H*DH*2)
    srd(24, 8, H*DH*D*2)
    srd(28, 10, B*SQ*D*2)
    e("s_cmp_eq_u32 s6, 3")
    e("s_cbranch_scc1 K2_LOADER")
    e("v_and_b32 v1, 15, v0"); e("v_lshrrev_b32 v2, 4, v0")
    e("v_lshrrev_b32 v3, 2, v1"); e("v_and_b32 v4, 3, v1")
    e("v_lshl_add_u32 v5, v2, 3, v3")
    e("v_lshlrev_b32 v6, 1, v3")
    e("v_lshrrev_b32 v7, 1, v4")
    e("v_xor_b32 v6, v6, v7")
    e("v_lshlrev_b32 v6, 4, v6")
    e("v_and_b32 v7, 1, v4")
    e("v_lshl_add_u32 v6, v7, 3, v6")
    e(f"v_lshl_add_u32 v{VRW}, v5, 7, v6")
    e("s_mul_i32 s7, s4, 144"); e("s_mul_i32 s18, s6, 48"); e("s_add_u32 s7, s7, s18")
    e("v_add_u32 v3, s7, v1")
    e("v_lshlrev_b32 v4, 13, v3")
    e(f"v_lshl_add_u32 v{VXO}, v2, 4, v4")
    e("v_lshlrev_b32 v4, 10, v3")
    e("s_lshl_b32 s18, s5, 7")
    e("v_add_u32 v4, s18, v4")
    e(f"v_lshl_add_u32 v{VOO}, v2, 3, v4")
    e("s_mov_b32 s41, 0"); e("s_mov_b32 s45, 0x20000"); e("s_mov_b32 s46, 0x40000")
    def vo2(nt,qt): return VO + (nt*3+qt)*4
    for i in range(48): e(f"v_mov_b32 v{VO+i}, 0")
    def vx2(buf,qt,ks): return 100 + (buf*12+qt*4+ks)*4
    e("s_mov_b32 s49, 0")
    def oload(buf):
        for qt in range(3):
            for ks in range(4):
                so = ["s41","s45","s46"][qt]
                e(f"buffer_load_dwordx4 {r4(vx2(buf,qt,ks))}, v{VXO}, s[20:23], {so} offen offset:{ks*64}")
        e(f"v_add_u32 v{VXO}, 256, v{VXO}")
    oload(0)
    e("s_mov_b32 s44, 8")
    lab("K2_LOOP")
    for s in range(4):
        buf = s & 1
        e("s_barrier")
        oload(buf ^ 1)
        e("s_waitcnt vmcnt(12)")
        base = s * SLOT
        for ks in range(4):
            for nt in range(4):
                f = vf(ks*4+nt)
                e(f"v_xor_b32 v{VT}, {nt*32}, v{VRW}")
                e(f"ds_read_b64_tr_b16 {r2(f)}, v{VT} offset:{base+ks*32*128}")
                e(f"ds_read_b64_tr_b16 {r2(f+2)}, v{VT} offset:{base+ks*32*128+4*128}")
                e("s_waitcnt lgkmcnt(0)")
                for qt in range(3):
                    e(f"v_mfma_f32_16x16x32_bf16 {r4(vo2(nt,qt))}, {r4(f)}, {r4(vx2(buf,qt,ks))}, {r4(vo2(nt,qt))}")
    e("s_sub_u32 s44, s44, 1"); e("s_cmp_lg_u32 s44, 0"); e("s_cbranch_scc1 K2_LOOP")
    nop(7); nop(1)
    e("s_mov_b32 s45, 0x4000"); e("s_mov_b32 s46, 0x8000")
    for qt in range(3):
        for nt in range(4):
            o = vo2(nt,qt)
            e(f"v_cvt_pk_bf16_f32 v{o}, v{o}, v{o+1}")
            e(f"v_cvt_pk_bf16_f32 v{o+1}, v{o+2}, v{o+3}")
            so = ["s41","s45","s46"][qt]
            e(f"buffer_store_dwordx2 {r2(o)}, v{VOO}, s[28:31], {so} offen offset:{nt*32}")
    e("s_endpgm")
    lab("K2_LOADER")
    e("v_and_b32 v1, 7, v0"); e("v_lshrrev_b32 v2, 3, v0")
    e("v_and_b32 v3, 3, v2"); e("v_lshlrev_b32 v3, 1, v3"); e("v_xor_b32 v3, v3, v1")
    e("v_lshlrev_b32 v3, 4, v3"); e("v_lshl_add_u32 v3, v2, 10, v3")
    e("s_lshl_b32 s18, s5, 7"); e("v_add_u32 v10, s18, v3")
    def issue(step):
        for i in range(16):
            e(f"s_mov_b32 m0, {(step%4)*SLOT + i*1024}")
            e(f"s_mov_b32 s48, {step*128*1024 + i*8*1024}")
            e("buffer_load_dwordx4 v10, s[24:27], s48 offen lds")
    issue(0); issue(1); issue(2)
    for s in range(32):
        e(f"s_waitcnt vmcnt({min(31-s,2)*16})")
        e("s_barrier")
        if s+3 < 32: issue(s+3)
    lab("K2_END")
    e("s_endpgm")

hdr = open("standalone__mha_block_cached__near_ridge.s.ref").read().split("; Override")[0]
out = hdr + "; @launch kernel=mha_attn_kernel grid=(1024,1,1) block=(256,1,1) lds=65536\n; @launch kernel=mha_oproj_kernel grid=(256,1,1) block=(256,1,1) lds=65536\n"
out += '.amdgcn_target "amdgcn-amd-amdhsa--gfx950"\n.text\n'
out += ".globl mha_attn_kernel\n.p2align 8\n.type mha_attn_kernel,@function\n"
k1(); out += "\n".join(L) + "\n"; L.clear()
out += ".globl mha_oproj_kernel\n.p2align 8\n.type mha_oproj_kernel,@function\n"
k2(); out += "\n".join(L) + "\n"
out += '.section .rodata,"a"\n'
for k in ("mha_attn_kernel", "mha_oproj_kernel"):
    out += f""".p2align 6
.amdhsa_kernel {k}
  .amdhsa_next_free_vgpr 256
  .amdhsa_next_free_sgpr 102
  .amdhsa_accum_offset 256
  .amdhsa_group_segment_fixed_size 0
  .amdhsa_kernarg_size 64
  .amdhsa_user_sgpr_count 2
  .amdhsa_user_sgpr_kernarg_segment_ptr 1
  .amdhsa_system_sgpr_workgroup_id_x 1
.end_amdhsa_kernel
"""
open("standalone__mha_block_cached__near_ridge.s", "w").write(out)
```

```python
import sys
L = []
def e(s): L.append("    " + s)
def lab(s): L.append(s + ":")
def nop(n): e(f"s_nop {n}")

B, SQ, D, H, SK, DH = 32, 144, 512, 32, 512, 128
SLOT = 16384
SCALE_LOG2E = 1.4426950408889634 / (128 ** 0.5)
import struct
def f2u(f): return struct.unpack("<I", struct.pack("<f", f))[0]

VQ = 0
VO = 48
VS = 144
VP = 192
VF = 216
VM = 232
VL = 235
VA = 238
VT = 241
VRA = 245
VRT = 246
VRW = 247
VXO = 248
VOO = 249
def vq(qt,u): return VQ + (qt*4+u)*4
def vo(dt,qt): return VO + (dt*3+qt)*4
def vs(kt,qt): return VS + (kt*3+qt)*4
def vx(buf,qt,ks): return VS + (buf*6+qt*2+ks)*4
def vp(ks,qt): return VP + (ks*3+qt)*4
def vf(i): return VF + (i%4)*4
def r4(b): return f"v[{b}:{b+3}]"
def r2(b): return f"v[{b}:{b+1}]"

def srd(dst, ptr, nbytes):
    e(f"s_mov_b32 s{dst}, s{ptr}")
    e(f"s_and_b32 s{dst+1}, s{ptr+1}, 0xffff")
    e(f"s_mov_b32 s{dst+2}, {nbytes}")
    e(f"s_mov_b32 s{dst+3}, 0x00020000")

def k1():
    lab("mha_attn_kernel")
    e("s_cmp_ge_u32 s2, 1024")
    e("s_cbranch_scc1 K1_END")
    e("s_load_dwordx8 s[8:15], s[0:1], 0")
    e("s_load_dwordx2 s[16:17], s[0:1], 56")
    e("s_lshr_b32 s4, s2, 5")
    e("s_and_b32 s5, s2, 31")
    e("v_lshrrev_b32 v1, 6, v0")
    nop(0)
    e("v_readfirstlane_b32 s6, v1")
    e("v_and_b32 v0, 63, v0")
    e("s_waitcnt lgkmcnt(0)")
    srd(20, 8, B*SQ*D*2)
    srd(24, 10, B*H*SK*DH*2)
    srd(28, 12, B*H*SK*DH*2)
    srd(32, 14, D*H*DH*2)
    srd(36, 16, B*SQ*H*DH*2)
    e("s_cmp_eq_u32 s6, 3")
    e("s_cbranch_scc1 K1_LOADER")
    e("v_and_b32 v1, 15, v0")
    e("v_lshrrev_b32 v2, 4, v0")
    e("v_xor_b32 v3, v1, v2")
    e("v_lshlrev_b32 v3, 4, v3")
    e(f"v_lshl_add_u32 v{VRA}, v1, 8, v3")
    e("v_lshrrev_b32 v3, 2, v1")
    e("v_and_b32 v4, 3, v1")
    e("v_lshl_add_u32 v5, v2, 2, v3")
    e("v_and_b32 v6, 7, v5")
    e("v_lshlrev_b32 v6, 1, v6")
    e("v_lshrrev_b32 v7, 1, v4")
    e("v_xor_b32 v6, v6, v7")
    e("v_lshlrev_b32 v6, 4, v6")
    e("v_and_b32 v7, 1, v4")
    e("v_lshl_add_u32 v6, v7, 3, v6")
    e(f"v_lshl_add_u32 v{VRT}, v5, 8, v6")
    e("v_lshl_add_u32 v5, v2, 3, v3")
    e("v_lshlrev_b32 v6, 2, v3")
    e("v_xor_b32 v6, v6, v4")
    e("v_lshlrev_b32 v6, 4, v6")
    e(f"v_lshl_add_u32 v{VRW}, v5, 8, v6")
    e("s_mul_i32 s7, s4, 144")
    e("s_mul_i32 s18, s6, 48")
    e("s_add_u32 s7, s7, s18")
    e("v_add_u32 v3, s7, v1")
    e("v_lshlrev_b32 v3, 10, v3")
    e(f"v_lshl_add_u32 v{VXO}, v2, 4, v3")
    e("v_add_u32 v3, s7, v1")
    e("v_lshlrev_b32 v3, 13, v3")
    e("s_lshl_b32 s18, s5, 8")
    e("v_add_u32 v3, s18, v3")
    e(f"v_lshl_add_u32 v{VOO}, v2, 3, v3")
    e("s_movk_i32 s40, 0x4000")
    e("s_movk_i32 s41, 0x0")
    e("s_mov_b32 s42, 0x8000")
    for i in range(96): e(f"v_mov_b32 v{VO+i}, 0")
    def xload(buf, step):
        for qt in range(3):
            for ks in range(2):
                so = ["s41","s40","s42"][qt]
                e(f"buffer_load_dwordx4 {r4(vx(buf,qt,ks))}, v{VXO}, s[20:23], {so} offen offset:{step*128+ks*64}")
    xload(0, 0)
    for s in range(8):
        buf = s & 1
        e("s_barrier")
        if s < 7: xload(buf ^ 1, s + 1)
        base = (s % 4) * SLOT
        fi = 0
        seq = [(ks, t) for ks in range(2) for t in range(8)]
        def wread(idx):
            ks, t = seq[idx]
            u = t >> 1
            off = base + ks*32*256
            e(f"v_xor_b32 v{VT}, {u*64}, v{VRW}")
            e(f"ds_read_b64_tr_b16 {r2(vf(idx))}, v{VT} offset:{off + (t&1)*8}")
            e(f"ds_read_b64_tr_b16 {r2(vf(idx)+2)}, v{VT} offset:{off + (t&1)*8 + 4*256}")
        wread(0); wread(1)
        e(f"s_waitcnt vmcnt({6 if s<7 else 0})")
        for idx in range(16):
            ks, t = seq[idx]
            if idx + 2 < 16: wread(idx + 2)
            e(f"s_waitcnt lgkmcnt({min(4, 2*(15-idx))})")
            for qt in range(3):
                e(f"v_mfma_f32_16x16x32_bf16 {r4(vo(t,qt))}, {r4(vf(idx))}, {r4(vx(buf,qt,ks))}, {r4(vo(t,qt))}")
    nop(7); nop(1)
    for qt in range(3):
        for u in range(4):
            a = vo(2*u,qt); b_ = vo(2*u+1,qt); q = vq(qt,u)
            e(f"v_cvt_pk_bf16_f32 v{q}, v{a}, v{a+1}")
            e(f"v_cvt_pk_bf16_f32 v{q+1}, v{a+2}, v{a+3}")
            e(f"v_cvt_pk_bf16_f32 v{q+2}, v{b_}, v{b_+1}")
            e(f"v_cvt_pk_bf16_f32 v{q+3}, v{b_+2}, v{b_+3}")
    for i in range(96): e(f"v_mov_b32 v{VO+i}, 0")
    for qt in range(3):
        e(f"v_mov_b32 v{VM+qt}, 0xff800000")
        e(f"v_mov_b32 v{VL+qt}, 0")
    e(f"s_mov_b32 s43, {f2u(SCALE_LOG2E)}")
    e("s_mov_b32 s44, 4")
    lab("K1_LOOP")
    for half in range(2):
        kb = (2*half) * SLOT; vb = (2*half+1) * SLOT
        e("s_barrier")
        for kt in range(4):
            for qt in range(3):
                for i in range(4): e(f"v_mov_b32 v{vs(kt,qt)+i}, 0")
        seq = [(kt,u) for kt in range(4) for u in range(4)]
        def kread(idx):
            kt,u = seq[idx]
            e(f"v_xor_b32 v{VT}, {u*64}, v{VRA}")
            e(f"ds_read_b128 {r4(vf(idx))}, v{VT} offset:{kb + kt*4096}")
        kread(0); kread(1)
        for idx in range(16):
            kt,u = seq[idx]
            if idx+2 < 16: kread(idx+2)
            e(f"s_waitcnt lgkmcnt({min(2,15-idx)})")
            for qt in range(3):
                e(f"v_mfma_f32_16x16x32_bf16 {r4(vs(kt,qt))}, {r4(vf(idx))}, {r4(vq(qt,u))}, {r4(vs(kt,qt))}")
        nop(7); nop(1)
        for qt in range(3):
            t0, t1 = VT, VT+1
            e(f"v_max3_f32 v{t0}, v{vs(0,qt)}, v{vs(0,qt)+1}, v{vs(0,qt)+2}")
            e(f"v_max_f32 v{t0}, v{t0}, v{vs(0,qt)+3}")
            for kt in range(1,4):
                e(f"v_max3_f32 v{t0}, v{t0}, v{vs(kt,qt)}, v{vs(kt,qt)+1}")
                e(f"v_max3_f32 v{t0}, v{t0}, v{vs(kt,qt)+2}, v{vs(kt,qt)+3}")
            e(f"v_mov_b32 v{t1}, v{t0}")
            nop(1)
            e(f"v_permlane32_swap_b32 v{t0}, v{t1}")
            e(f"v_max_f32 v{t0}, v{t0}, v{t1}")
            e(f"v_mov_b32 v{t1}, v{t0}")
            nop(1)
            e(f"v_permlane16_swap_b32 v{t0}, v{t1}")
            e(f"v_max3_f32 v{t0}, v{t0}, v{t1}, v{VM+qt}")
            e(f"v_sub_f32 v{t1}, v{VM+qt}, v{t0}")
            e(f"v_mul_f32 v{t1}, s43, v{t1}")
            e(f"v_exp_f32 v{VA+qt}, v{t1}")
            e(f"v_mov_b32 v{VM+qt}, v{t0}")
            e(f"v_mul_f32 v{t0}, s43, v{t0}")
            e(f"v_mul_f32 v{VL+qt}, v{VL+qt}, v{VA+qt}")
            for kt in range(4):
                for i in range(4):
                    r = vs(kt,qt)+i
                    e(f"v_fma_f32 v{r}, v{r}, s43, -v{t0}")
                    e(f"v_exp_f32 v{r}, v{r}")
            nop(0)
            for kt in range(4):
                for i in range(4):
                    e(f"v_add_f32 v{VL+qt}, v{VL+qt}, v{vs(kt,qt)+i}")
            for ks in range(2):
                p = vp(ks,qt); a = vs(2*ks,qt); b_ = vs(2*ks+1,qt)
                e(f"v_cvt_pk_bf16_f32 v{p}, v{a}, v{a+1}")
                e(f"v_cvt_pk_bf16_f32 v{p+1}, v{a+2}, v{a+3}")
                e(f"v_cvt_pk_bf16_f32 v{p+2}, v{b_}, v{b_+1}")
                e(f"v_cvt_pk_bf16_f32 v{p+3}, v{b_+2}, v{b_+3}")
            for dt in range(8):
                for i in range(4):
                    e(f"v_mul_f32 v{vo(dt,qt)+i}, v{vo(dt,qt)+i}, v{VA+qt}")
        e("s_barrier")
        seq = [(ks,t) for ks in range(2) for t in range(8)]
        def vread(idx):
            ks,t = seq[idx]
            off = vb + ks*32*256
            e(f"v_xor_b32 v{VT}, {t*32}, v{VRT}")
            e(f"ds_read_b64_tr_b16 {r2(vf(idx))}, v{VT} offset:{off}")
            e(f"ds_read_b64_tr_b16 {r2(vf(idx)+2)}, v{VT} offset:{off+16*256}")
        vread(0); vread(1)
        for idx in range(16):
            ks,t = seq[idx]
            if idx+2 < 16: vread(idx+2)
            e(f"s_waitcnt lgkmcnt({min(4,2*(15-idx))})")
            for qt in range(3):
                e(f"v_mfma_f32_16x16x32_bf16 {r4(vo(t,qt))}, {r4(vf(idx))}, {r4(vp(ks,qt))}, {r4(vo(t,qt))}")
    e("s_sub_u32 s44, s44, 1")
    e("s_cmp_lg_u32 s44, 0")
    e("s_cbranch_scc1 K1_LOOP")
    nop(7); nop(1)
    for qt in range(3):
        t0,t1 = VT,VT+1
        e(f"v_mov_b32 v{t0}, v{VL+qt}")
        e(f"v_mov_b32 v{t1}, v{VL+qt}")
        nop(1)
        e(f"v_permlane32_swap_b32 v{t0}, v{t1}")
        e(f"v_add_f32 v{t0}, v{t0}, v{t1}")
        e(f"v_mov_b32 v{t1}, v{t0}")
        nop(1)
        e(f"v_permlane16_swap_b32 v{t0}, v{t1}")
        e(f"v_add_f32 v{t0}, v{t0}, v{t1}")
        e(f"v_rcp_f32 v{t0}, v{t0}")
        nop(0)
        for dt in range(8):
            o = vo(dt,qt)
            for i in range(4): e(f"v_mul_f32 v{o+i}, v{o+i}, v{t0}")
            e(f"v_cvt_pk_bf16_f32 v{o}, v{o}, v{o+1}")
            e(f"v_cvt_pk_bf16_f32 v{o+1}, v{o+2}, v{o+3}")
            so = ["s41","s45","s46"][qt]
            if dt == 0 and qt == 0:
                e("s_mov_b32 s45, 0x20000"); e("s_mov_b32 s46, 0x40000")
            e(f"buffer_store_dwordx2 {r2(o)}, v{VOO}, s[36:39], {so} offen offset:{dt*32}")
    e("s_endpgm")
    lab("K1_LOADER")
    e("v_and_b32 v1, 15, v0")
    e("v_lshrrev_b32 v2, 4, v0")
    e("v_lshlrev_b32 v3, 2, v2")
    e("v_xor_b32 v3, v3, v1")
    e("v_lshlrev_b32 v3, 4, v3")
    e("v_lshl_add_u32 v3, v2, 13, v3")
    e("s_lshl_b32 s18, s5, 8")
    e("v_add_u32 v10, s18, v3")
    for j in range(4):
        e(f"v_add_u32 v3, {4*j}, v2")
        e("v_xor_b32 v3, v3, v1")
        e("v_lshlrev_b32 v3, 4, v3")
        e(f"v_lshl_add_u32 v{11+j}, v2, 8, v3")
    for j in range(2):
        e(f"v_add_u32 v3, {4*j}, v2")
        e("v_lshlrev_b32 v3, 1, v3")
        e("v_xor_b32 v3, v3, v1")
        e("v_lshlrev_b32 v3, 4, v3")
        e(f"v_lshl_add_u32 v{15+j}, v2, 8, v3")
    e("s_lshl_b32 s47, s2, 17")
    def issue(step):
        slot = (step % 4) * SLOT
        for i in range(16):
            e(f"s_mov_b32 m0, {slot + i*1024}")
            if step < 8:
                e(f"s_mov_b32 s48, {step*64*8192 + i*4*8192}")
                e(f"buffer_load_dwordx4 v10, s[32:35], s48 offen lds")
            else:
                j = (step-8) >> 1
                e(f"s_add_u32 s48, s47, {j*16384 + i*1024}")
                if (step & 1) == 0:
                    e(f"buffer_load_dwordx4 v{11+(i&3)}, s[24:27], s48 offen lds")
                else:
                    e(f"buffer_load_dwordx4 v{15+(i&1)}, s[28:31], s48 offen lds")
    issue(0); issue(1); issue(2)
    for s in range(24):
        n = min(23 - s, 2) * 16
        e(f"s_waitcnt vmcnt({n})")
        e("s_barrier")
        if s + 3 < 24: issue(s + 3)
    lab("K1_END")
    e("s_endpgm")

def k2():
    lab("mha_oproj_kernel")
    e("s_cmp_ge_u32 s2, 256")
    e("s_cbranch_scc1 K2_END")
    e("s_load_dwordx4 s[8:11], s[0:1], 32")
    e("s_load_dwordx2 s[16:17], s[0:1], 56")
    e("s_and_b32 s4, s2, 7")
    e("s_lshl_b32 s4, s4, 2")
    e("s_lshr_b32 s5, s2, 3")
    e("s_and_b32 s5, s5, 3")
    e("s_add_u32 s4, s4, s5")
    e("s_lshr_b32 s5, s2, 5")
    e("v_lshrrev_b32 v1, 6, v0"); nop(0)
    e("v_readfirstlane_b32 s6, v1")
    e("v_and_b32 v0, 63, v0")
    e("s_waitcnt lgkmcnt(0)")
    srd(20, 16, B*SQ*H*DH*2)
    srd(24, 8, H*DH*D*2)
    srd(28, 10, B*SQ*D*2)
    e("s_cmp_eq_u32 s6, 3")
    e("s_cbranch_scc1 K2_LOADER")
    e("v_and_b32 v1, 15, v0"); e("v_lshrrev_b32 v2, 4, v0")
    e("v_lshrrev_b32 v3, 2, v1"); e("v_and_b32 v4, 3, v1")
    e("v_lshl_add_u32 v5, v2, 3, v3")
    e("v_lshlrev_b32 v6, 1, v3")
    e("v_lshrrev_b32 v7, 1, v4")
    e("v_xor_b32 v6, v6, v7")
    e("v_lshlrev_b32 v6, 4, v6")
    e("v_and_b32 v7, 1, v4")
    e("v_lshl_add_u32 v6, v7, 3, v6")
    e(f"v_lshl_add_u32 v{VRW}, v5, 7, v6")
    e("s_mul_i32 s7, s4, 144"); e("s_mul_i32 s18, s6, 48"); e("s_add_u32 s7, s7, s18")
    e("v_add_u32 v3, s7, v1")
    e("v_lshlrev_b32 v4, 13, v3")
    e(f"v_lshl_add_u32 v{VXO}, v2, 4, v4")
    e("v_lshlrev_b32 v4, 10, v3")
    e("s_lshl_b32 s18, s5, 7")
    e("v_add_u32 v4, s18, v4")
    e(f"v_lshl_add_u32 v{VOO}, v2, 3, v4")
    e("s_mov_b32 s41, 0"); e("s_mov_b32 s45, 0x20000"); e("s_mov_b32 s46, 0x40000")
    def vo2(nt,qt): return VO + (nt*3+qt)*4
    for i in range(48): e(f"v_mov_b32 v{VO+i}, 0")
    def vx2(buf,qt,ks): return 100 + (buf*12+qt*4+ks)*4
    e("s_mov_b32 s49, 0")
    def oload(buf):
        for qt in range(3):
            for ks in range(4):
                so = ["s41","s45","s46"][qt]
                e(f"buffer_load_dwordx4 {r4(vx2(buf,qt,ks))}, v{VXO}, s[20:23], {so} offen offset:{ks*64}")
        e(f"v_add_u32 v{VXO}, 256, v{VXO}")
    oload(0)
    e("s_mov_b32 s44, 8")
    lab("K2_LOOP")
    for s in range(4):
        buf = s & 1
        e("s_barrier")
        oload(buf ^ 1)
        e("s_waitcnt vmcnt(12)")
        base = s * SLOT
        seq = [(ks,nt) for ks in range(4) for nt in range(4)]
        def wr(idx):
            ks,nt = seq[idx]; f = vf(idx)
            e(f"v_xor_b32 v{VT}, {nt*32}, v{VRW}")
            e(f"ds_read_b64_tr_b16 {r2(f)}, v{VT} offset:{base+ks*32*128}")
            e(f"ds_read_b64_tr_b16 {r2(f+2)}, v{VT} offset:{base+ks*32*128+4*128}")
        wr(0); wr(1)
        for idx in range(16):
            ks,nt = seq[idx]
            if idx+2 < 16: wr(idx+2)
            e(f"s_waitcnt lgkmcnt({min(4,2*(15-idx))})")
            for qt in range(3):
                e(f"v_mfma_f32_16x16x32_bf16 {r4(vo2(nt,qt))}, {r4(vf(idx))}, {r4(vx2(buf,qt,ks))}, {r4(vo2(nt,qt))}")
    e("s_sub_u32 s44, s44, 1"); e("s_cmp_lg_u32 s44, 0"); e("s_cbranch_scc1 K2_LOOP")
    nop(7); nop(1)
    e("s_mov_b32 s45, 0x4000"); e("s_mov_b32 s46, 0x8000")
    for qt in range(3):
        for nt in range(4):
            o = vo2(nt,qt)
            e(f"v_cvt_pk_bf16_f32 v{o}, v{o}, v{o+1}")
            e(f"v_cvt_pk_bf16_f32 v{o+1}, v{o+2}, v{o+3}")
            so = ["s41","s45","s46"][qt]
            e(f"buffer_store_dwordx2 {r2(o)}, v{VOO}, s[28:31], {so} offen offset:{nt*32}")
    e("s_endpgm")
    lab("K2_LOADER")
    e("v_and_b32 v1, 7, v0"); e("v_lshrrev_b32 v2, 3, v0")
    e("v_and_b32 v3, 3, v2"); e("v_lshlrev_b32 v3, 1, v3"); e("v_xor_b32 v3, v3, v1")
    e("v_lshlrev_b32 v3, 4, v3"); e("v_lshl_add_u32 v3, v2, 10, v3")
    e("s_lshl_b32 s18, s5, 7"); e("v_add_u32 v10, s18, v3")
    def issue(step):
        for i in range(16):
            e(f"s_mov_b32 m0, {(step%4)*SLOT + i*1024}")
            e(f"s_mov_b32 s48, {step*128*1024 + i*8*1024}")
            e("buffer_load_dwordx4 v10, s[24:27], s48 offen lds")
    issue(0); issue(1); issue(2)
    for s in range(32):
        e(f"s_waitcnt vmcnt({min(31-s,2)*16})")
        e("s_barrier")
        if s+3 < 32: issue(s+3)
    lab("K2_END")
    e("s_endpgm")

hdr = open("standalone__mha_block_cached__near_ridge.s.ref").read().split("; Override")[0]
out = hdr + "; @launch kernel=mha_attn_kernel grid=(1024,1,1) block=(256,1,1) lds=65536\n; @launch kernel=mha_oproj_kernel grid=(256,1,1) block=(256,1,1) lds=65536\n"
out += '.amdgcn_target "amdgcn-amd-amdhsa--gfx950"\n.text\n'
out += ".globl mha_attn_kernel\n.p2align 8\n.type mha_attn_kernel,@function\n"
k1(); out += "\n".join(L) + "\n"; L.clear()
out += ".globl mha_oproj_kernel\n.p2align 8\n.type mha_oproj_kernel,@function\n"
k2(); out += "\n".join(L) + "\n"
out += '.section .rodata,"a"\n'
for k in ("mha_attn_kernel", "mha_oproj_kernel"):
    out += f""".p2align 6
.amdhsa_kernel {k}
  .amdhsa_next_free_vgpr 256
  .amdhsa_next_free_sgpr 102
  .amdhsa_accum_offset 256
  .amdhsa_group_segment_fixed_size 0
  .amdhsa_kernarg_size 64
  .amdhsa_user_sgpr_count 2
  .amdhsa_user_sgpr_kernarg_segment_ptr 1
  .amdhsa_system_sgpr_workgroup_id_x 1
.end_amdhsa_kernel
"""
open("standalone__mha_block_cached__near_ridge.s", "w").write(out)
```
